```python
import torch

def _softmax(x, axis=-1):
    return torch.softmax(x, dim=axis)
def _gelu(x):
    return torch.nn.functional.gelu(x, approximate="tanh")
def _silu(x):
    return torch.nn.functional.silu(x)
def _sigmoid(x):
    return torch.sigmoid(x)
def _layernorm(x, axis=-1, eps=1e-5):
    m = x.mean(dim=axis, keepdim=True)
    v = x.var(dim=axis, keepdim=True, unbiased=False)
    return (x - m) / torch.sqrt(v + eps)
def _scatter_add(tgt, idx, src, axis=0):
    return tgt.clone().index_add_(axis, idx, src)
def _segment_sum(src, seg, n):
    out = torch.zeros((n,) + src.shape[1:], dtype=src.dtype)
    return out.index_add_(0, seg, src)
def _pad(x, pw):
    flat = tuple(v for pair in reversed(pw) for v in pair)
    return torch.nn.functional.pad(x, flat)

kernel_name = 'sequential_preLN__mha_block__geglu_ffn__prompt'

def setup_inputs():

    _w = (lambda a: (lambda t: t.to(torch.bfloat16) if t.is_floating_point() else t)(torch.as_tensor(a)))
    def _A_setup():
        B, S, D, H = 1, 2048, 576, 32
        return {
            "x": _w((lambda *s: torch.randn(*s, dtype=torch.bfloat16) * 0.05)(B, S, D)),
            "wqkv": _w((lambda *s: torch.randn(*s, dtype=torch.bfloat16) * 0.05)(D, 3 * D)),
            "wo": _w((lambda *s: torch.randn(*s, dtype=torch.bfloat16) * 0.05)(D, D)),
        }
    _A_in = _A_setup()

    def _B_setup():
        B, S, D, F = 1, 2048, 576, 4608
        return {
            "x": _w((lambda *s: torch.randn(*s, dtype=torch.bfloat16) * 0.05)(B, S, D)),
            "w_gate": _w((lambda *s: torch.randn(*s, dtype=torch.bfloat16) * 0.05)(D, F)),
            "w_up": _w((lambda *s: torch.randn(*s, dtype=torch.bfloat16) * 0.05)(D, F)),
            "w_down": _w((lambda *s: torch.randn(*s, dtype=torch.bfloat16) * 0.05)(F, D)),
        }
    _B_in = _B_setup()

    return {
        "A_x": _A_in["x"],
        "A_wqkv": _A_in["wqkv"],
        "A_wo": _A_in["wo"],
        "B_x": _B_in["x"],
        "B_w_gate": _B_in["w_gate"],
        "B_w_up": _B_in["w_up"],
        "B_w_down": _B_in["w_down"],
    }

def reference(A_x, A_wqkv, A_wo, B_x, B_w_gate, B_w_up, B_w_down):
    def _A_ref(x, wqkv, wo):
        B, S, D = x.shape
        H = 32
        Dh = D // H
        qkv = (lambda x, *d: x.permute(*d))((x @ wqkv).reshape(B, S, 3, H, Dh), 2, 0, 3, 1, 4)
        q, k, v = qkv[0], qkv[1], qkv[2]
        scores = torch.einsum("bhqd,bhkd->bhqk", q, k) * (Dh ** -0.5)
        p = _softmax(scores, axis=-1)
        o = torch.einsum("bhqk,bhkd->bhqd", p, v)
        return (lambda x, *d: x.permute(*d))(o, 0, 2, 1, 3).reshape(B, S, D) @ wo

    def _B_ref(x, w_gate, w_up, w_down):
        return (_gelu(x @ w_gate) * (x @ w_up)) @ w_down

    x = A_x
    h = x + _A_ref(_layernorm(x, axis=-1), A_wqkv, A_wo)
    h2 = h + _B_ref(_layernorm(h, axis=-1), B_w_gate, B_w_up, B_w_down)
    return h2
```

```python
import re


class R:
    __slots__ = ("k", "i", "n")

    def __init__(self, k, i, n=1):
        self.k, self.i, self.n = k, i, n

    def __getitem__(self, idx):
        if isinstance(idx, slice):
            a = idx.start or 0
            b = self.n if idx.stop is None else idx.stop
            assert 0 <= a < b <= self.n, (a, b, self.n)
            return R(self.k, self.i + a, b - a)
        assert 0 <= idx < self.n, (idx, self.n)
        return R(self.k, self.i + idx, 1)

    def sub(self, a, n):
        assert 0 <= a and a + n <= self.n, (a, n, self.n)
        return R(self.k, self.i + a, n)

    def __str__(self):
        if self.n == 1:
            return f"{self.k}{self.i}"
        return f"{self.k}[{self.i}:{self.i + self.n - 1}]"

    def regs(self):
        return {(self.k, self.i + j) for j in range(self.n)}


VCC = "vcc"
EXEC = "exec"
M0 = "m0"


def regs_of(op):
    if isinstance(op, R):
        return op.regs()
    if isinstance(op, str):
        o = op.strip()
        neg = o.lstrip("-")
        if neg.startswith("abs(") or neg.startswith("|"):
            neg = neg.strip("|")
            neg = neg[4:-1] if neg.startswith("abs(") else neg
        if neg == "vcc":
            return {("s", 106), ("s", 107)}
        if neg == "exec":
            return {("x", 0)}
        if neg == "m0":
            return {("m", 0)}
        m = re.fullmatch(r"([vsa])(\d+)", neg)
        if m:
            return {(m.group(1), int(m.group(2)))}
        m = re.fullmatch(r"([vsa])\[(\d+):(\d+)\]", neg)
        if m:
            return {(m.group(1), j) for j in range(int(m.group(2)), int(m.group(3)) + 1)}
    return set()


def fmt(op):
    if isinstance(op, float):
        import struct
        if op in (0.0, 0.5, -0.5, 1.0, -1.0, 2.0, -2.0, 4.0, -4.0):
            return repr(op) if op != 0.0 else "0"
        return "0x%08x" % struct.unpack("<I", struct.pack("<f", op))[0]
    if isinstance(op, int):
        if -16 <= op <= 64:
            return str(op)
        return "0x%x" % (op & 0xFFFFFFFF)
    return str(op)


TRANS = ("v_exp_f32", "v_log_f32", "v_rcp_f32", "v_rsq_f32", "v_sqrt_f32", "v_sin_f32", "v_cos_f32")


class Ins:
    __slots__ = ("text", "kind", "defs", "uses", "passes", "srcc", "ab", "tag", "states", "wide_store_data")

    def __init__(self, text, kind, defs=(), uses=(), passes=0, srcc=None, ab=None, states=1, wide=None):
        self.text, self.kind = text, kind
        self.defs, self.uses = set(defs), set(uses)
        self.passes = passes
        self.srcc = srcc or set()
        self.ab = ab or set()
        self.states = states
        self.wide_store_data = wide or set()
        self.tag = None


class Prog:
    def __init__(self):
        self.ins = []
        self.vm = []
        self.lg = []
        self.ntag = 0
        self.uid = 0

    def add(self, ins):
        self.ins.append(ins)
        return ins

    def raw(self, text, kind="other", defs=(), uses=(), **kw):
        d, u = set(), set()
        for x in defs:
            d |= regs_of(x)
        for x in uses:
            u |= regs_of(x)
        return self.add(Ins(text, kind, d, u, **kw))

    def comment(self, s):
        self.add(Ins("; " + s, "comment", states=0))

    def label(self, name):
        self.add(Ins(name + ":", "label", states=0))

    def newlabel(self, base):
        self.uid += 1
        return f"L_{base}_{self.uid}"

    def s(self, op, *ops):
        text = op + " " + ", ".join(fmt(o) for o in ops)
        if op.startswith("s_cmp") or op.startswith("s_bitcmp"):
            return self.raw(text, "salu", defs=(), uses=ops)
        return self.raw(text, "salu", defs=ops[:1], uses=ops[1:])

    def branch(self, op, target):
        return self.add(Ins(f"{op} {target}", "branch"))

    def nop(self, n):
        while n > 0:
            k = min(n, 16)
            self.add(Ins(f"s_nop {k - 1}", "nop", states=k))
            n -= k

    def barrier(self):
        self.add(Ins("s_barrier", "other"))

    def setprio(self, p):
        self.add(Ins(f"s_setprio {p}", "other"))

    def endpgm(self):
        self.add(Ins("s_endpgm", "branch"))

    def sload(self, dst, base, off):
        n = dst.n
        op = {1: "s_load_dword", 2: "s_load_dwordx2", 4: "s_load_dwordx4", 8: "s_load_dwordx8", 16: "s_load_dwordx16"}[n]
        self.raw(f"{op} {dst}, {base}, {fmt(off) if off > 64 else off}", "smem", defs=[dst], uses=[base])
        self.lg.append("SMEM")

    def v(self, op, *ops, mods="", ndst=1):
        text = op + " " + ", ".join(fmt(o) for o in ops) + ((" " + mods) if mods else "")
        kind = "trans" if op.split("_e")[0] in TRANS or op in TRANS else "valu"
        defs, uses = list(ops[:ndst]), list(ops[ndst:])
        if op.startswith("v_fmac") or op.startswith("v_dot2c") or ("dst_unused:UNUSED_PRESERVE" in mods):
            uses = uses + defs
        if op.startswith("v_permlane32_swap") or op.startswith("v_permlane16_swap"):
            defs = list(ops[:2])
            uses = list(ops[:2])
            kind = "permlane"
        if op.startswith("v_readfirstlane") or op.startswith("v_readlane"):
            kind = "readlane"
        if "dpp" in op or "row_" in mods or "quad_perm" in mods:
            kind = "dpp"
        if op.startswith("v_cndmask") and len(ops) == 3:
            uses.append("vcc")
        return self.raw(text, kind, defs=defs, uses=uses)

    def mfma(self, shape, d, a, b, c):
        op, passes = {
            "32x32x16": ("v_mfma_f32_32x32x16_bf16", 8),
            "32x32x8": ("v_mfma_f32_32x32x8_bf16", 8),
            "16x16x32": ("v_mfma_f32_16x16x32_bf16", 4),
            "4x4x4": ("v_mfma_f32_4x4x4_16b_bf16", 2),
        }[shape]
        text = f"{op} {d}, {a}, {b}, {fmt(c)}"
        ins = Ins(text, "mfma", regs_of(d), regs_of(a) | regs_of(b) | regs_of(c), passes=passes,
                  srcc=regs_of(c), ab=regs_of(a) | regs_of(b))
        return self.add(ins)

    def _newtag(self):
        self.ntag += 1
        return self.ntag

    def ds_read(self, op, dst, addr, offset=0):
        assert 0 <= offset < 65536, offset
        t = self._newtag()
        o = f" offset:{offset}" if offset else ""
        self.raw(f"{op} {dst}, {addr}{o}", "ds_read", defs=[dst], uses=[addr])
        self.lg.append(t)
        return t

    def ds_write(self, op, addr, src, offset=0):
        assert 0 <= offset < 65536, offset
        t = self._newtag()
        o = f" offset:{offset}" if offset else ""
        self.raw(f"{op} {addr}, {src}{o}", "ds_write", uses=[addr, src])
        self.lg.append(t)
        return t

    def ds_raw(self, text, defs=(), uses=()):
        t = self._newtag()
        self.raw(text, "ds_read", defs=defs, uses=uses)
        self.lg.append(t)
        return t

    def bload(self, dst, voff, srd, soff=0, offset=0, flags=""):
        assert 0 <= offset < 4096, offset
        op = {1: "buffer_load_dword", 2: "buffer_load_dwordx2", 3: "buffer_load_dwordx3", 4: "buffer_load_dwordx4"}[dst.n]
        t = self._newtag()
        o = f" offset:{offset}" if offset else ""
        f = (" " + flags) if flags else ""
        self.raw(f"{op} {dst}, {voff}, {srd}, {fmt(soff)} offen{o}{f}", "vmem", defs=[dst], uses=[voff, srd, soff])
        self.vm.append(t)
        return t

    def bstore(self, src, voff, srd, soff=0, offset=0, flags="", op=None):
        assert 0 <= offset < 4096, offset
        if op is None:
            op = {1: "buffer_store_dword", 2: "buffer_store_dwordx2", 3: "buffer_store_dwordx3", 4: "buffer_store_dwordx4"}[src.n]
        t = self._newtag()
        o = f" offset:{offset}" if offset else ""
        f = (" " + flags) if flags else ""
        self.raw(f"{op} {src}, {voff}, {srd}, {fmt(soff)} offen{o}{f}", "vmem", uses=[src, voff, srd, soff],
                 wide=(regs_of(src) if src.n >= 3 else None))
        self.vm.append(t)
        return t

    def dma(self, voff, srd, soff=0, offset=0, width=4, flags=""):
        assert 0 <= offset < 4096, offset
        op = {1: "buffer_load_dword", 4: "buffer_load_dwordx4"}[width]
        t = self._newtag()
        o = f" offset:{offset}" if offset else ""
        f = (" " + flags) if flags else ""
        self.raw(f"{op} {voff}, {srd}, {fmt(soff)} offen{o}{f} lds", "dma", uses=[voff, srd, soff, "m0"])
        self.vm.append(t)
        return t

    def wait(self, vm=None, lg=None):
        parts = []
        if vm is not None:
            n = self._count(self.vm, vm)
            if n is not None:
                assert n <= 63, f"vmcnt {n} too large"
                parts.append(f"vmcnt({n})")
                self.vm = self.vm[len(self.vm) - n:] if n else []
        if lg is not None:
            if "SMEM" in self.lg:
                n = 0
            else:
                n = self._count(self.lg, lg)
            if n is not None:
                n = min(n, 15)
                parts.append(f"lgkmcnt({n})")
                self.lg = self.lg[len(self.lg) - n:] if n else []
        if parts:
            self.add(Ins("s_waitcnt " + " ".join(parts), "wait"))

    @staticmethod
    def _count(q, tags):
        if tags == "all":
            return 0 if q else None
        if not isinstance(tags, (list, tuple, set)):
            tags = [tags]
        last = -1
        for t in tags:
            if t in q:
                last = max(last, q.index(t))
        if last < 0:
            return None
        return len(q) - 1 - last

    def wait_raw(self, vm=None, lg=None):
        parts = []
        if vm is not None:
            parts.append(f"vmcnt({vm})")
            self.vm = self.vm[len(self.vm) - vm:] if 0 < vm < len(self.vm) else ([] if vm == 0 else self.vm)
        if lg is not None:
            parts.append(f"lgkmcnt({lg})")
            self.lg = self.lg[len(self.lg) - lg:] if 0 < lg < len(self.lg) else ([] if lg == 0 else self.lg)
        self.add(Ins("s_waitcnt " + " ".join(parts), "wait"))

    def srd(self, dst, base_lo, base_hi, nbytes, off=0):
        if off:
            self.s("s_add_u32", dst[0], base_lo, off)
            self.s("s_addc_u32", dst[1], base_hi, 0)
            self.s("s_and_b32", dst[1], dst[1], 0xFFFF)
        else:
            self.s("s_mov_b32", dst[0], base_lo)
            self.s("s_and_b32", dst[1], base_hi, 0xFFFF)
        self.s("s_mov_b32", dst[2], nbytes)
        self.s("s_mov_b32", dst[3], 0x20000)


VALU_KINDS = ("valu", "trans", "permlane", "readlane", "dpp")


def required_states(p, c):
    need = 0
    pv = p.kind in VALU_KINDS
    cv = c.kind in VALU_KINDS
    vdefs = {r for r in p.defs if r[0] in "va"}
    sdefs = {r for r in p.defs if r[0] == "s"}
    if pv:
        if c.kind == "mfma" and vdefs & c.uses:
            need = max(need, 2)
        if c.kind == "permlane" and vdefs & c.uses:
            need = max(need, 2)
        if c.kind == "dpp" and vdefs & c.uses:
            need = max(need, 2)
        if c.kind == "readlane" and vdefs & c.uses:
            need = max(need, 1)
        if p.kind == "trans" and (cv or c.kind in ("vmem", "ds_write", "ds_read", "dma")) and c.kind != "trans" and vdefs & c.uses:
            need = max(need, 1)
        if "sdwa" in p.text or "op_sel" in p.text:
            if cv and vdefs & (c.uses | c.defs):
                need = max(need, 1)
        if sdefs:
            if c.kind in ("vmem", "dma") and sdefs & c.uses:
                need = max(need, 5)
            if cv and sdefs & c.uses:
                need = max(need, 4 if c.kind == "readlane" else 2)
            if c.kind in ("salu", "smem", "branch") and (sdefs & c.uses):
                need = max(need, 2)
        if ("x", 0) in p.defs:
            if c.kind in ("mfma", "readlane", "permlane"):
                need = max(need, 4)
            if c.kind == "dpp":
                need = max(need, 5)
    if pv and p.text.startswith("v_dot") and vdefs & (c.uses | c.defs):
        pop, cop = p.text.split()[0], c.text.split()[0]
        if pop == cop:
            ops = [o.strip() for o in c.text.split(None, 1)[1].split(",")]
            ab = set()
            for o in ops[1:3]:
                ab |= regs_of(o.split()[0])
            if vdefs & ab:
                need = max(need, 3)
        else:
            need = max(need, 3)
    if p.kind == "salu" and ("m", 0) in p.defs and c.kind in ("dma",) :
        need = max(need, 1)
    if p.kind == "mfma":
        P = p.passes
        d = p.defs
        if c.kind == "mfma":
            if d & c.ab:
                need = max(need, {2: 5, 4: 8, 8: 12, 16: 20}[P])
            if d & c.srcc:
                if d == c.srcc and c.passes == P:
                    need = max(need, 2 if P == 2 else 0)
                else:
                    need = max(need, {2: 4, 4: 6, 8: 10, 16: 18}[P])
            elif d & c.defs:
                need = max(need, {2: 4, 4: 6, 8: 10, 16: 18}[P])
        elif cv or c.kind in ("vmem", "ds_read", "ds_write", "dma"):
            if d & (c.uses | c.defs):
                need = max(need, {2: 5, 4: 8, 8: 12, 16: 20}[P])
        if cv and (p.srcc & c.defs):
            need = max(need, {2: 1, 4: 3, 8: 7, 16: 15}[P])
        if c.kind in ("vmem", "ds_read") and (p.srcc & c.defs):
            need = max(need, {2: 1, 4: 3, 8: 7, 16: 15}[P])
    if p.wide_store_data:
        if p.wide_store_data & c.defs:
            need = max(need, 2 if cv else 1)
    return need


def pad_hazards(ins, window=24):
    src = list(ins)
    extra = [0] * len(src)
    labels = {x.text[:-1]: i for i, x in enumerate(src) if x.kind == "label"}
    preds = {}
    for i, x in enumerate(src):
        if x.kind == "branch":
            t = x.text.split()
            if len(t) > 1 and t[1] in labels:
                preds.setdefault(labels[t[1]], []).append(i)
    for i, c in enumerate(src):
        if c.kind in ("comment", "label", "nop", "wait"):
            continue
        worst = 0
        stack = [(i - 1, 0, True)]
        seen = set()
        while stack:
            j, dist, fall = stack.pop()
            while j >= 0 and dist < window:
                if (j, dist) in seen:
                    break
                seen.add((j, dist))
                p = src[j]
                if p.kind == "label":
                    for bidx in preds.get(j, []):
                        stack.append((bidx, dist, False))
                    j -= 1
                    fall = True
                    continue
                if fall and p.kind == "branch" and (p.text.startswith("s_branch") or p.text.startswith("s_endpgm")):
                    break
                fall = True
                need = required_states(p, c)
                if need > dist:
                    worst = max(worst, need - dist)
                dist += p.states + extra[j]
                j -= 1
        extra[i] = worst
    out = []
    for i, x in enumerate(src):
        n = extra[i]
        while n > 0:
            k = min(n, 16)
            out.append(Ins(f"s_nop {k - 1}", "nop", states=k))
            n -= k
        out.append(x)
    return out


def render(ins):
    lines = []
    for x in ins:
        if x.kind == "label":
            lines.append(x.text)
        else:
            lines.append("    " + x.text)
    return "\n".join(lines) + "\n"


class Alloc:
    def __init__(self, kind, start, limit):
        self.kind, self.next, self.limit = kind, start, limit
        self.hi = start

    def get(self, n=1, align=1):
        a = max(align, 2 if n >= 2 else 1)
        if self.kind == "s" and n >= 4:
            a = max(a, 4)
        i = (self.next + a - 1) // a * a
        self.next = i + n
        assert self.next <= self.limit, f"out of {self.kind} regs: {self.next}"
        self.hi = max(self.hi, self.next)
        return R(self.kind, i, n)

    def mark(self):
        return self.next

    def release(self, m):
        self.next = m


def kernel_text(name, prog, nvgpr, nsgpr):
    body = render(pad_hazards(prog.ins))
    nv = max(8, (nvgpr + 7) // 8 * 8)
    acc = (nv + 3) // 4 * 4
    if acc > 256:
        acc = 256
    code = f""".text
.globl {name}
.p2align 8
.type {name},@function
{name}:
{body}"""
    kd = f""".section .rodata,"a"
.p2align 6
.amdhsa_kernel {name}
  .amdhsa_next_free_vgpr {nv}
  .amdhsa_next_free_sgpr {max(nsgpr, 16)}
  .amdhsa_accum_offset {acc}
  .amdhsa_group_segment_fixed_size 0
  .amdhsa_kernarg_size 80
  .amdhsa_user_sgpr_count 2
  .amdhsa_user_sgpr_kernarg_segment_ptr 1
  .amdhsa_system_sgpr_workgroup_id_x 1
.end_amdhsa_kernel
"""
    return code, kd
```

```python
import importlib
import sys
from asmlib import kernel_text

HDR = open("sequential_preLN__mha_block__geglu_ffn__prompt.s.ref").read().split("; Override launch")[0]


def emit(mods, path):
    ks = []
    for m in mods:
        mod = importlib.import_module(m)
        ks.append(mod.build())
    out = [HDR]
    for k in ks:
        out.append(f"; @launch kernel={k['name']} grid=({k['grid']},1,1) block=({k['block']},1,1) lds={k['lds']}\n")
    out.append('.amdgcn_target "amdgcn-amd-amdhsa--gfx950"\n')
    kds = []
    seen = set()
    for k in ks:
        if k["name"] in seen:
            continue
        seen.add(k["name"])
        code, kd = kernel_text(k["name"], k["prog"], k["nv"], k["ns"])
        out.append(code)
        kds.append(kd)
        print(f"{k['name']}: vgpr={k['nv']} sgpr={k['ns']} lds={k['lds']} instrs={len(k['prog'].ins)}", file=sys.stderr)
    out += kds
    open(path, "w").write("".join(out))


if __name__ == "__main__":
    path = sys.argv[1]
    emit(sys.argv[2:], path)
```

```python
import re


class R:
    __slots__ = ("k", "i", "n")

    def __init__(self, k, i, n=1):
        self.k, self.i, self.n = k, i, n

    def __getitem__(self, idx):
        if isinstance(idx, slice):
            a = idx.start or 0
            b = self.n if idx.stop is None else idx.stop
            assert 0 <= a < b <= self.n, (a, b, self.n)
            return R(self.k, self.i + a, b - a)
        assert 0 <= idx < self.n, (idx, self.n)
        return R(self.k, self.i + idx, 1)

    def sub(self, a, n):
        assert 0 <= a and a + n <= self.n, (a, n, self.n)
        return R(self.k, self.i + a, n)

    def __str__(self):
        if self.n == 1:
            return f"{self.k}{self.i}"
        return f"{self.k}[{self.i}:{self.i + self.n - 1}]"

    def regs(self):
        return {(self.k, self.i + j) for j in range(self.n)}


VCC = "vcc"
EXEC = "exec"
M0 = "m0"


def regs_of(op):
    if isinstance(op, R):
        return op.regs()
    if isinstance(op, str):
        o = op.strip()
        neg = o.lstrip("-")
        if neg.startswith("abs(") or neg.startswith("|"):
            neg = neg.strip("|")
            neg = neg[4:-1] if neg.startswith("abs(") else neg
        if neg == "vcc":
            return {("s", 106), ("s", 107)}
        if neg == "exec":
            return {("x", 0)}
        if neg == "m0":
            return {("m", 0)}
        m = re.fullmatch(r"([vsa])(\d+)", neg)
        if m:
            return {(m.group(1), int(m.group(2)))}
        m = re.fullmatch(r"([vsa])\[(\d+):(\d+)\]", neg)
        if m:
            return {(m.group(1), j) for j in range(int(m.group(2)), int(m.group(3)) + 1)}
    return set()


def fmt(op):
    if isinstance(op, float):
        import struct
        if op in (0.0, 0.5, -0.5, 1.0, -1.0, 2.0, -2.0, 4.0, -4.0):
            return repr(op) if op != 0.0 else "0"
        return "0x%08x" % struct.unpack("<I", struct.pack("<f", op))[0]
    if isinstance(op, int):
        if -16 <= op <= 64:
            return str(op)
        return "0x%x" % (op & 0xFFFFFFFF)
    return str(op)


TRANS = ("v_exp_f32", "v_log_f32", "v_rcp_f32", "v_rsq_f32", "v_sqrt_f32", "v_sin_f32", "v_cos_f32")


class Ins:
    __slots__ = ("text", "kind", "defs", "uses", "passes", "srcc", "ab", "tag", "states", "wide_store_data")

    def __init__(self, text, kind, defs=(), uses=(), passes=0, srcc=None, ab=None, states=1, wide=None):
        self.text, self.kind = text, kind
        self.defs, self.uses = set(defs), set(uses)
        self.passes = passes
        self.srcc = srcc or set()
        self.ab = ab or set()
        self.states = states
        self.wide_store_data = wide or set()
        self.tag = None


class Prog:
    def __init__(self):
        self.ins = []
        self.vm = []
        self.lg = []
        self.ntag = 0
        self.uid = 0

    def add(self, ins):
        self.ins.append(ins)
        return ins

    def raw(self, text, kind="other", defs=(), uses=(), **kw):
        d, u = set(), set()
        for x in defs:
            d |= regs_of(x)
        for x in uses:
            u |= regs_of(x)
        return self.add(Ins(text, kind, d, u, **kw))

    def comment(self, s):
        self.add(Ins("; " + s, "comment", states=0))

    def label(self, name):
        self.add(Ins(name + ":", "label", states=0))

    GUID = [0]

    def newlabel(self, base):
        Prog.GUID[0] += 1
        return f"L_{base}_{Prog.GUID[0]}"

    def s(self, op, *ops):
        text = op + " " + ", ".join(fmt(o) for o in ops)
        if op.startswith("s_cmp") or op.startswith("s_bitcmp"):
            return self.raw(text, "salu", defs=(), uses=ops)
        return self.raw(text, "salu", defs=ops[:1], uses=ops[1:])

    def branch(self, op, target):
        return self.add(Ins(f"{op} {target}", "branch"))

    def nop(self, n):
        while n > 0:
            k = min(n, 16)
            self.add(Ins(f"s_nop {k - 1}", "nop", states=k))
            n -= k

    def barrier(self):
        self.add(Ins("s_barrier", "other"))

    def setprio(self, p):
        self.add(Ins(f"s_setprio {p}", "other"))

    def endpgm(self):
        self.add(Ins("s_endpgm", "branch"))

    def sload(self, dst, base, off):
        n = dst.n
        op = {1: "s_load_dword", 2: "s_load_dwordx2", 4: "s_load_dwordx4", 8: "s_load_dwordx8", 16: "s_load_dwordx16"}[n]
        self.raw(f"{op} {dst}, {base}, {fmt(off) if off > 64 else off}", "smem", defs=[dst], uses=[base])
        self.lg.append("SMEM")

    def v(self, op, *ops, mods="", ndst=1):
        text = op + " " + ", ".join(fmt(o) for o in ops) + ((" " + mods) if mods else "")
        kind = "trans" if op.split("_e")[0] in TRANS or op in TRANS else "valu"
        defs, uses = list(ops[:ndst]), list(ops[ndst:])
        if op.startswith("v_fmac") or op.startswith("v_dot2c") or ("dst_unused:UNUSED_PRESERVE" in mods):
            uses = uses + defs
        if op.startswith("v_permlane32_swap") or op.startswith("v_permlane16_swap"):
            defs = list(ops[:2])
            uses = list(ops[:2])
            kind = "permlane"
        if op.startswith("v_readfirstlane") or op.startswith("v_readlane"):
            kind = "readlane"
        if "dpp" in op or "row_" in mods or "quad_perm" in mods:
            kind = "dpp"
        if op.startswith("v_cndmask") and len(ops) == 3:
            uses.append("vcc")
        return self.raw(text, kind, defs=defs, uses=uses)

    def mfma(self, shape, d, a, b, c):
        op, passes = {
            "32x32x16": ("v_mfma_f32_32x32x16_bf16", 8),
            "32x32x8": ("v_mfma_f32_32x32x8_bf16", 8),
            "16x16x32": ("v_mfma_f32_16x16x32_bf16", 4),
            "16x16x16": ("v_mfma_f32_16x16x16_bf16", 4),
            "4x4x4": ("v_mfma_f32_4x4x4_16b_bf16", 2),
        }[shape]
        text = f"{op} {d}, {a}, {b}, {fmt(c)}"
        ins = Ins(text, "mfma", regs_of(d), regs_of(a) | regs_of(b) | regs_of(c), passes=passes,
                  srcc=regs_of(c), ab=regs_of(a) | regs_of(b))
        return self.add(ins)

    def _newtag(self):
        self.ntag += 1
        return self.ntag

    def ds_read(self, op, dst, addr, offset=0):
        assert 0 <= offset < 65536, offset
        t = self._newtag()
        o = f" offset:{offset}" if offset else ""
        self.raw(f"{op} {dst}, {addr}{o}", "ds_read", defs=[dst], uses=[addr])
        self.lg.append(t)
        return t

    def ds_write(self, op, addr, src, offset=0):
        assert 0 <= offset < 65536, offset
        t = self._newtag()
        o = f" offset:{offset}" if offset else ""
        self.raw(f"{op} {addr}, {src}{o}", "ds_write", uses=[addr, src])
        self.lg.append(t)
        return t

    def ds_raw(self, text, defs=(), uses=()):
        t = self._newtag()
        self.raw(text, "ds_read", defs=defs, uses=uses)
        self.lg.append(t)
        return t

    def bload(self, dst, voff, srd, soff=0, offset=0, flags=""):
        assert 0 <= offset < 4096, offset
        op = {1: "buffer_load_dword", 2: "buffer_load_dwordx2", 3: "buffer_load_dwordx3", 4: "buffer_load_dwordx4"}[dst.n]
        t = self._newtag()
        o = f" offset:{offset}" if offset else ""
        f = (" " + flags) if flags else ""
        self.raw(f"{op} {dst}, {voff}, {srd}, {fmt(soff)} offen{o}{f}", "vmem", defs=[dst], uses=[voff, srd, soff])
        self.vm.append(t)
        return t

    def bstore(self, src, voff, srd, soff=0, offset=0, flags="", op=None):
        assert 0 <= offset < 4096, offset
        if op is None:
            op = {1: "buffer_store_dword", 2: "buffer_store_dwordx2", 3: "buffer_store_dwordx3", 4: "buffer_store_dwordx4"}[src.n]
        t = self._newtag()
        o = f" offset:{offset}" if offset else ""
        f = (" " + flags) if flags else ""
        self.raw(f"{op} {src}, {voff}, {srd}, {fmt(soff)} offen{o}{f}", "vmem", uses=[src, voff, srd, soff],
                 wide=(regs_of(src) if src.n >= 3 else None))
        self.vm.append(t)
        return t

    def dma(self, voff, srd, soff=0, offset=0, width=4, flags=""):
        assert 0 <= offset < 4096, offset
        op = {1: "buffer_load_dword", 4: "buffer_load_dwordx4"}[width]
        t = self._newtag()
        o = f" offset:{offset}" if offset else ""
        f = (" " + flags) if flags else ""
        self.raw(f"{op} {voff}, {srd}, {fmt(soff)} offen{o}{f} lds", "dma", uses=[voff, srd, soff, "m0"])
        self.vm.append(t)
        return t

    def wait(self, vm=None, lg=None):
        parts = []
        if vm is not None:
            n = self._count(self.vm, vm)
            if n is not None:
                assert n <= 63, f"vmcnt {n} too large"
                parts.append(f"vmcnt({n})")
                self.vm = self.vm[len(self.vm) - n:] if n else []
        if lg is not None:
            if "SMEM" in self.lg:
                n = 0
            else:
                n = self._count(self.lg, lg)
            if n is not None:
                n = min(n, 15)
                parts.append(f"lgkmcnt({n})")
                self.lg = self.lg[len(self.lg) - n:] if n else []
        if parts:
            self.add(Ins("s_waitcnt " + " ".join(parts), "wait"))

    @staticmethod
    def _count(q, tags):
        if tags == "all":
            return 0 if q else None
        if not isinstance(tags, (list, tuple, set)):
            tags = [tags]
        last = -1
        for t in tags:
            if t in q:
                last = max(last, q.index(t))
        if last < 0:
            return None
        return len(q) - 1 - last

    def wait_raw(self, vm=None, lg=None):
        parts = []
        if vm is not None:
            parts.append(f"vmcnt({vm})")
            self.vm = self.vm[len(self.vm) - vm:] if 0 < vm < len(self.vm) else ([] if vm == 0 else self.vm)
        if lg is not None:
            parts.append(f"lgkmcnt({lg})")
            self.lg = self.lg[len(self.lg) - lg:] if 0 < lg < len(self.lg) else ([] if lg == 0 else self.lg)
        self.add(Ins("s_waitcnt " + " ".join(parts), "wait"))

    def srd(self, dst, base_lo, base_hi, nbytes, off=0):
        if off:
            self.s("s_add_u32", dst[0], base_lo, off)
            self.s("s_addc_u32", dst[1], base_hi, 0)
            self.s("s_and_b32", dst[1], dst[1], 0xFFFF)
        else:
            self.s("s_mov_b32", dst[0], base_lo)
            self.s("s_and_b32", dst[1], base_hi, 0xFFFF)
        self.s("s_mov_b32", dst[2], nbytes)
        self.s("s_mov_b32", dst[3], 0x20000)


VALU_KINDS = ("valu", "trans", "permlane", "readlane", "dpp")


def required_states(p, c):
    need = 0
    pv = p.kind in VALU_KINDS
    cv = c.kind in VALU_KINDS
    vdefs = {r for r in p.defs if r[0] in "va"}
    sdefs = {r for r in p.defs if r[0] == "s"}
    if pv:
        if c.kind == "mfma" and vdefs & c.uses:
            need = max(need, 2)
        if c.kind == "permlane" and vdefs & c.uses:
            need = max(need, 2)
        if c.kind == "dpp" and vdefs & c.uses:
            need = max(need, 2)
        if c.kind == "readlane" and vdefs & c.uses:
            need = max(need, 1)
        if p.kind == "trans" and (cv or c.kind in ("vmem", "ds_write", "ds_read", "dma")) and c.kind != "trans" and vdefs & c.uses:
            need = max(need, 1)
        if "sdwa" in p.text or "op_sel" in p.text:
            if cv and vdefs & (c.uses | c.defs):
                need = max(need, 1)
        if sdefs:
            if c.kind in ("vmem", "dma") and sdefs & c.uses:
                need = max(need, 5)
            if cv and sdefs & c.uses:
                need = max(need, 4 if c.kind == "readlane" else 2)
            if c.kind in ("salu", "smem", "branch") and (sdefs & c.uses):
                need = max(need, 2)
        if ("x", 0) in p.defs:
            if c.kind in ("mfma", "readlane", "permlane"):
                need = max(need, 4)
            if c.kind == "dpp":
                need = max(need, 5)
    if pv and p.text.startswith("v_dot") and vdefs & (c.uses | c.defs):
        pop, cop = p.text.split()[0], c.text.split()[0]
        if pop == cop:
            ops = [o.strip() for o in c.text.split(None, 1)[1].split(",")]
            ab = set()
            for o in ops[1:3]:
                ab |= regs_of(o.split()[0])
            if vdefs & ab:
                need = max(need, 3)
        else:
            need = max(need, 3)
    if p.kind == "salu" and ("m", 0) in p.defs and c.kind in ("dma",) :
        need = max(need, 1)
    if p.kind == "mfma":
        P = p.passes
        d = p.defs
        if c.kind == "mfma":
            if d & c.ab:
                need = max(need, {2: 5, 4: 8, 8: 12, 16: 20}[P])
            if d & c.srcc:
                if d == c.srcc and c.passes == P:
                    need = max(need, 2 if P == 2 else 0)
                else:
                    need = max(need, {2: 4, 4: 6, 8: 10, 16: 18}[P])
            elif d & c.defs:
                need = max(need, {2: 4, 4: 6, 8: 10, 16: 18}[P])
        elif cv or c.kind in ("vmem", "ds_read", "ds_write", "dma"):
            if d & (c.uses | c.defs):
                need = max(need, {2: 5, 4: 8, 8: 12, 16: 20}[P])
        if cv and (p.srcc & c.defs):
            need = max(need, {2: 1, 4: 3, 8: 7, 16: 15}[P])
        if c.kind in ("vmem", "ds_read") and (p.srcc & c.defs):
            need = max(need, {2: 1, 4: 3, 8: 7, 16: 15}[P])
    if p.wide_store_data:
        if p.wide_store_data & c.defs:
            need = max(need, 2 if cv else 1)
    return need


def pad_hazards(ins, window=24):
    src = list(ins)
    extra = [0] * len(src)
    labels = {x.text[:-1]: i for i, x in enumerate(src) if x.kind == "label"}
    preds = {}
    for i, x in enumerate(src):
        if x.kind == "branch":
            t = x.text.split()
            if len(t) > 1 and t[1] in labels:
                preds.setdefault(labels[t[1]], []).append(i)
    for i, c in enumerate(src):
        if c.kind in ("comment", "label", "nop", "wait"):
            continue
        worst = 0
        stack = [(i - 1, 0, True)]
        seen = set()
        while stack:
            j, dist, fall = stack.pop()
            while j >= 0 and dist < window:
                if (j, dist) in seen:
                    break
                seen.add((j, dist))
                p = src[j]
                if p.kind == "label":
                    for bidx in preds.get(j, []):
                        stack.append((bidx, dist, False))
                    j -= 1
                    fall = True
                    continue
                if fall and p.kind == "branch" and (p.text.startswith("s_branch") or p.text.startswith("s_endpgm")):
                    break
                fall = True
                need = required_states(p, c)
                if need > dist:
                    worst = max(worst, need - dist)
                dist += p.states + extra[j]
                j -= 1
        extra[i] = worst
    out = []
    for i, x in enumerate(src):
        n = extra[i]
        while n > 0:
            k = min(n, 16)
            out.append(Ins(f"s_nop {k - 1}", "nop", states=k))
            n -= k
        out.append(x)
    return out


def render(ins):
    lines = []
    for x in ins:
        if x.kind == "label":
            lines.append(x.text)
        else:
            lines.append("    " + x.text)
    return "\n".join(lines) + "\n"


class Alloc:
    def __init__(self, kind, start, limit):
        self.kind, self.next, self.limit = kind, start, limit
        self.hi = start

    def get(self, n=1, align=1):
        a = max(align, 2 if n >= 2 else 1)
        if self.kind == "s" and n >= 4:
            a = max(a, 4)
        i = (self.next + a - 1) // a * a
        self.next = i + n
        assert self.next <= self.limit, f"out of {self.kind} regs: {self.next}"
        self.hi = max(self.hi, self.next)
        return R(self.kind, i, n)

    def mark(self):
        return self.next

    def release(self, m):
        self.next = m


def kernel_text(name, prog, nvgpr, nsgpr):
    body = render(pad_hazards(prog.ins))
    nv = max(8, (nvgpr + 7) // 8 * 8)
    acc = (nv + 3) // 4 * 4
    if acc > 256:
        acc = 256
    code = f""".text
.globl {name}
.p2align 8
.type {name},@function
{name}:
{body}"""
    kd = f""".section .rodata,"a"
.p2align 6
.amdhsa_kernel {name}
  .amdhsa_next_free_vgpr {nv}
  .amdhsa_next_free_sgpr {max(nsgpr, 16)}
  .amdhsa_accum_offset {acc}
  .amdhsa_group_segment_fixed_size 0
  .amdhsa_kernarg_size 80
  .amdhsa_user_sgpr_count 2
  .amdhsa_user_sgpr_kernarg_segment_ptr 1
  .amdhsa_system_sgpr_workgroup_id_x 1
.end_amdhsa_kernel
"""
    return code, kd
```
